```python
import torch

def _softmax(x, axis=-1):
    return torch.softmax(x, dim=axis)
def _gelu(x):
    return torch.nn.functional.gelu(x, approximate="tanh")
def _silu(x):
    return torch.nn.functional.silu(x)
def _sigmoid(x):
    return torch.sigmoid(x)
def _layernorm(x, axis=-1, eps=1e-5):
    m = x.mean(dim=axis, keepdim=True)
    v = x.var(dim=axis, keepdim=True, unbiased=False)
    return (x - m) / torch.sqrt(v + eps)
def _scatter_add(tgt, idx, src, axis=0):
    return tgt.clone().index_add_(axis, idx, src)
def _segment_sum(src, seg, n):
    out = torch.zeros((n,) + src.shape[1:], dtype=src.dtype)
    return out.index_add_(0, seg, src)
def _pad(x, pw):
    flat = tuple(v for pair in reversed(pw) for v in pair)
    return torch.nn.functional.pad(x, flat)

kernel_name = 'gated_mix__ssm_conv_s4d__dense_activation_mish__prompt'

def setup_inputs():

    _w = (lambda a: (lambda t: t.to(torch.bfloat16) if t.is_floating_point() else t)(torch.as_tensor(a)))
    def _A_setup():
        Bsz, L, D, N = 1, 2048, 576, 128
        return {
            "u": _w((lambda *s: torch.randn(*s, dtype=torch.bfloat16) * 0.05)(Bsz, L, D)),
            "log_A_real": _w((lambda *s: torch.randn(*s, dtype=torch.bfloat16) * 6.4)(D, N) * 0.5),
            "A_imag": _w((lambda *s: torch.randn(*s, dtype=torch.bfloat16) * 0.05)(D, N) * 3.14),
            "C_real": _w((lambda *s: torch.randn(*s, dtype=torch.bfloat16) * 0.1)(D, N) / N ** 0.5),
            "C_imag": _w((lambda *s: torch.randn(*s, dtype=torch.bfloat16) * 0.1)(D, N) / N ** 0.5),
            "log_dt": _w((lambda *s: torch.randn(*s, dtype=torch.bfloat16) * 0.05)(D) * 0.5 - 4.0),
            "D_skip": _w((lambda *s: torch.randn(*s, dtype=torch.bfloat16) * 0.05)(D)),
        }
    _A_in = _A_setup()

    def _B_setup():
        B, S, D, F = 1, 2048, 576, 4608
        return {
            "x": _w((lambda *s: torch.randn(*s, dtype=torch.bfloat16) * 0.05)(B, S, D)),
            "w1": _w((lambda *s: torch.randn(*s, dtype=torch.bfloat16) * 6.4)(D, F) * (D ** -0.5)),
            "b1": _w((lambda *s: torch.randn(*s, dtype=torch.bfloat16) * 0.05)(F)),
            "w2": _w((lambda *s: torch.randn(*s, dtype=torch.bfloat16) * 0.05)(F, D) * (F ** -0.5)),
        }
    _B_in = _B_setup()

    return {
        "A_u": _A_in["u"],
        "A_log_A_real": _A_in["log_A_real"],
        "A_A_imag": _A_in["A_imag"],
        "A_C_real": _A_in["C_real"],
        "A_C_imag": _A_in["C_imag"],
        "A_log_dt": _A_in["log_dt"],
        "A_D_skip": _A_in["D_skip"],
        "B_x": _B_in["x"],
        "B_w1": _B_in["w1"],
        "B_b1": _B_in["b1"],
        "B_w2": _B_in["w2"],
        "gate_w": _w((lambda *s: torch.randn(*s, dtype=torch.bfloat16) * 0.05)(576) * 16.0),
    }

def reference(A_u, A_log_A_real, A_A_imag, A_C_real, A_C_imag, A_log_dt, A_D_skip, B_x, B_w1, B_b1, B_w2, gate_w):
    def _A_ref(u, log_A_real, A_imag, C_real, C_imag, log_dt, D_skip):
        L = u.shape[1]
        dt = torch.exp(log_dt)
        A = -torch.exp(log_A_real) + 1j * A_imag
        C = (C_real + 1j * C_imag) * dt[:, None]
        pos = (lambda x, dt: x.to(dt))(torch.arange(L), log_dt.dtype)
        P = torch.exp((A * dt[:, None])[:, :, None] * pos[None, None, :])
        K = 2.0 * torch.einsum("dn,dnl->dl", C, P).real
        L2 = 2 * L
        u_t = (lambda x, *d: x.permute(*d))(u, 0, 2, 1)
        Kf = (lambda x, *a, **k: torch.fft.rfft(x.float(), *a, **k))(K, L2)
        Uf = (lambda x, *a, **k: torch.fft.rfft(x.float(), *a, **k))(u_t, L2)
        y = (lambda x, *a, **k: torch.fft.irfft(x, *a, **k).to(torch.bfloat16))(Uf * Kf[None, :, :], L2)[:, :, :L]
        y = (lambda x, *d: x.permute(*d))(y, 0, 2, 1)
        return y + u * D_skip[None, None, :]

    def _B_ref(x, w1, b1, w2):
        h = torch.einsum("bsd,df->bsf", x, w1) + b1
        sp = torch.log1p(torch.exp(-torch.abs(h))) + torch.where(h > 0, h, torch.zeros_like(h))
        act = h * torch.tanh(sp)
        return torch.einsum("bsf,fd->bsd", act, w2)

    x = A_u
    g = _sigmoid((x * gate_w).sum(-1, keepdims=True))
    a = _A_ref(x, A_log_A_real, A_A_imag, A_C_real, A_C_imag, A_log_dt, A_D_skip)
    b = _B_ref(x, B_w1, B_b1, B_w2)
    return g * a + (1 - g) * b
```

```python
from asmfw import *
from mlp import srd, LOG2E
UT=0; UTS=4608
KC=41472; KCS=4160
PRM=74752
TAB=98304
RED=106496
assert TAB%8192==0
AT_OFF=0x2000000
G_OFF=0x2400000
INV2PI=0x3e22f983
QY=[[0,3,4,7],[1,2,5,6]]
def abr_body(P,c):
    P("s_load_dwordx4 s[40:43], s[0:1], 0")
    P("s_load_dwordx4 s[44:47], s[0:1], 16")
    P("s_load_dwordx4 s[48:51], s[0:1], 32")
    P("s_load_dwordx2 s[52:53], s[0:1], 48")
    P("s_load_dwordx2 s[54:55], s[0:1], 88")
    P("s_load_dwordx2 s[74:75], s[0:1], 112")
    P("v_and_b32 v1, 63, v0\nv_lshrrev_b32 v2, 6, v0")
    P("s_sub_u32 s36, s2, 192\ns_mul_i32 s37, s36, 9")
    P("v_readfirstlane_b32 s35, v2")
    P(f"s_mov_b32 s34, {LOG2E}\ns_mov_b32 s33, {INV2PI}")
    P("s_waitcnt lgkmcnt(0)")
    srd(P,8,40,2359296); srd(P,20,74,0x10000000)
    srd(P,12,42,147456); srd(P,16,44,147456); srd(P,24,46,147456); srd(P,28,48,147456)
    srd(P,76,50,1152); srd(P,80,52,1152); srd(P,84,54,1152)
    P("s_cmp_ge_u32 s35, 4\ns_cbranch_scc1 L_cwave")
    K=Prog()
    K("s_lshl_b32 s38, s37, 8")
    K("v_lshlrev_b32 v3, 1, v0")
    K("s_lshl_b32 s39, s37, 1")
    for r in range(5):
        b=28+8*r
        K(f"buffer_load_ushort v{b}, v3, s[12:15], s38 offen offset:{512*r}")
        K(f"buffer_load_ushort v{b+1}, v3, s[16:19], s38 offen offset:{512*r}")
        K(f"buffer_load_ushort v{b+2}, v3, s[24:27], s38 offen offset:{512*r}")
        K(f"buffer_load_ushort v{b+3}, v3, s[28:31], s38 offen offset:{512*r}")
        K(f"v_lshrrev_b32 v{b+5}, 7, v0\nv_lshlrev_b32 v{b+5}, 1, v{b+5}")
        K(f"buffer_load_ushort v{b+4}, v{b+5}, s[76:79], s39 offen offset:{4*r}")
    K("v_and_b32 v88, 15, v1\nv_lshrrev_b32 v89, 4, v1")
    K("v_and_b32 v90, 7, v88\nv_lshrrev_b32 v91, 3, v88\nv_lshl_add_u32 v90, v91, 7, v90\nv_cvt_f32_u32 v2, v90")
    K("v_and_b32 v90, 3, v88\nv_lshlrev_b32 v90, 1, v90\nv_lshrrev_b32 v91, 2, v88\nv_lshl_add_u32 v90, v91, 7, v90\nv_add_u32 v90, 256, v90")
    K("v_and_b32 v92, 1, v88\nv_lshlrev_b32 v92, 2, v92\nv_lshrrev_b32 v91, 1, v88\nv_lshl_add_u32 v92, v91, 7, v92")
    K("v_cmp_gt_u32 vcc, 8, v88\nv_cndmask_b32 v90, v92, v90, vcc\nv_cvt_f32_u32 v3, v90")
    K("v_min_u32 v90, 8, v88\nv_lshlrev_b32 v90, 7, v90\nv_add_u32 v90, 1024, v90\nv_cvt_f32_u32 v4, v90")
    K("v_lshlrev_b32 v90, 3, v88\nv_cvt_f32_u32 v5, v90")
    K(f"s_lshl_b32 s38, s35, 9\nv_lshlrev_b32 v6, 6, v89\nv_add_u32 v6, s38, v6\nv_add_u32 v6, {PRM}, v6")
    K(f"v_lshl_add_u32 v7, v89, 6, v88\nv_lshlrev_b32 v7, 2, v7\nv_add_u32 v7, {TAB}, v7")
    K(f"v_lshlrev_b32 v9, 4, v0\nv_add_u32 v8, {TAB}, v9\nv_add_u32 v9, {KC}, v9")
    K("v_lshlrev_b32 v90, 3, v0\nv_sub_u32 v90, 2047, v90")
    for i in range(15):
        a=10+i
        K(f"v_subrev_u32 v91, {i}, v90")
        K(f"v_cvt_f32_i32 v92, v91\nv_cvt_pk_bf16_f32 v92, v92, v92\nv_and_b32 v92, 0xffff0000, v92")
        K(f"v_cvt_i32_f32 v93, v92")
        K(f"v_lshrrev_b32 v92, 23, v92\nv_subrev_u32 v92, 134, v92\nv_max_i32 v92, 0, v92")
        K(f"v_lshrrev_b32 v94, 7, v93\nv_and_b32 v95, 7, v93\nv_lshl_add_u32 v94, v94, 3, v95\nv_lshrrev_b32 v94, v92, v94\nv_lshl_add_u32 v94, v92, 3, v94")
        K(f"v_bfe_u32 v95, v93, 3, 4\nv_lshl_add_u32 v94, v94, 4, v95\nv_lshlrev_b32 v94, 2, v94")
        K(f"v_cmp_gt_i32 vcc, 0, v91\nv_cndmask_b32 v94, v94, v27, vcc" if False else f"v_mov_b32 v95, 3072\nv_cmp_gt_i32 vcc, 0, v91\nv_cndmask_b32 v94, v94, v95, vcc")
        K(f"v_add_u32 v{a}, {TAB}, v94")
    K("v_mov_b32 v88, 0\nv_mov_b32 v89, 0\nv_mov_b32 v90, 0\nv_mov_b32 v91, 0")
    K("ds_write_b128 v8, v[88:91]\nds_write_b128 v8, v[88:91] offset:4096")
    K(f"v_mul_u32_u24 v92, {KCS}, v1\nv_cmp_gt_u32 vcc, 8, v0\ns_and_saveexec_b64 s[38:39], vcc")
    K(f"ds_write_b128 v92, v[88:91] offset:{KC+4096}")
    K("s_mov_b64 exec, s[38:39]")
    K(f"v_lshlrev_b32 v92, 4, v0")
    for r in range(5):
        b=28+8*r
        K(f"v_lshlrev_b32 v{b}, 16, v{b}\nv_lshlrev_b32 v{b+4}, 16, v{b+4}")
        K(f"v_mul_f32 v{b}, s34, v{b}\nv_mul_f32 v{b+4}, s34, v{b+4}\nv_exp_f32 v{b}, v{b}\nv_exp_f32 v{b+4}, v{b+4}")
        K(f"v_lshlrev_b32 v{b+1}, 16, v{b+1}\nv_lshlrev_b32 v{b+2}, 16, v{b+2}\nv_lshlrev_b32 v{b+3}, 16, v{b+3}")
        K(f"v_cvt_pk_bf16_f32 v{b+5}, v{b}, v{b+4}")
        K(f"v_lshlrev_b32 v{b}, 16, v{b+5}\nv_and_b32 v{b+4}, 0xffff0000, v{b+5}")
        K(f"v_mul_f32 v{b}, v{b}, v{b+4}\nv_mul_f32 v{b+1}, v{b+1}, v{b+4}\nv_mul_f32 v{b+2}, v{b+2}, v{b+4}\nv_mul_f32 v{b+3}, v{b+3}, v{b+4}")
        K(f"v_mul_f32_e64 v{b}, -v{b}, s34\nv_mul_f32 v{b+1}, s33, v{b+1}\nv_add_f32 v{b+2}, v{b+2}, v{b+2}\nv_add_f32 v{b+3}, v{b+3}, v{b+3}")
        if r==4: K("v_cmp_gt_u32 vcc, 128, v0\ns_and_saveexec_b64 s[38:39], vcc")
        o=PRM+4096*r
        K(f"ds_write_b128 v92, v[{b}:{b+3}] offset:{o}" if o<65536 else f"v_add_u32 v93, {o}, v92\nds_write_b128 v93, v[{b}:{b+3}]")
        if r==4: K("s_mov_b64 exec, s[38:39]")
    K("s_waitcnt lgkmcnt(0)\ns_barrier")
    K("s_mov_b32 s38, 9")
    K(".p2align 3\nL_kloop:")
    for ks in range(2):
        for i in range(4): K(f"ds_read_b128 v[{28+16*ks+4*i}:{31+16*ks+4*i}], v6 offset:{256*ks+16*i}")
    def value(dst, Hreg, pr, T, isB):
        t,f,s=T
        L=[f"v_mul_f32 v{t}, v{pr}, v{Hreg}", f"v_mul_f32 v{f}, v{pr+1}, v{Hreg}", f"v_exp_f32 v{t}, v{t}", f"v_fract_f32 v{f}, v{f}",
           f"v_sin_f32 v{s}, v{f}", f"v_cos_f32 v{f}, v{f}", f"v_mul_f32 v{s}, v{s}, v{t}", f"v_mul_f32 v{f}, v{f}, v{t}"]
        if not isB: L.append(f"v_cvt_pk_bf16_f32 v{dst}, v{f}, v{s}")
        else:
            L+= [f"v_mul_f32 v{t}, v{pr+2}, v{f}", f"v_mul_f32 v{f}, v{pr+3}, v{f}",
                 f"v_fma_f32 v{t}, -v{pr+3}, v{s}, v{t}", f"v_fma_f32 v{f}, -v{pr+2}, v{s}, -v{f}", f"v_cvt_pk_bf16_f32 v{dst}, v{t}, v{f}"]
        return L
    TS=[(88,89,90),(91,92,93),(94,95,25)]
    for ks in range(2):
        vals=[]
        for i in range(4): vals.append((72+i,5,28+16*ks+4*i,True))
        for tl in range(3):
            for i in range(4): vals.append((60+4*tl+i,2+tl,28+16*ks+4*i,False))
        k=0
        while k<len(vals):
            grp=vals[k:k+3] if len(vals)-k!=4 else vals[k:k+2]
            seqs=[value(d,h,pr,TS[n],b) for n,(d,h,pr,b) in enumerate(grp)]
            for step in range(max(map(len,seqs))):
                for sq in seqs:
                    if step<len(sq): K(sq[step])
            k+=len(grp)
        for tl in range(3):
            K(f"v_mfma_f32_16x16x32_bf16 v[{76+4*tl}:{79+4*tl}], v[{60+4*tl}:{63+4*tl}], v[72:75], "+("0" if ks==0 else f"v[{76+4*tl}:{79+4*tl}]"))
    K("v_add_u32 v6, 2048, v6")
    for tl in range(3):
        for r in range(4): K(f"ds_add_f32 v7, v{76+4*tl+r} offset:{1024*tl+64*r}")
    K("s_waitcnt lgkmcnt(0)\ns_barrier")
    for i in range(15): K(f"ds_read_b32 v{28+i}, v{10+i}")
    K("v_xor_b32 v7, 4096, v7\nv_xor_b32 v8, 4096, v8")
    K("v_mov_b32 v88, 0\nv_mov_b32 v89, 0\nv_mov_b32 v90, 0\nv_mov_b32 v91, 0")
    K("ds_write_b128 v8, v[88:91]")
    for i in range(15): K(f"v_xor_b32 v{10+i}, 4096, v{10+i}")
    w=lambda i: 28+i
    arrs={0:44,1:50,2:56,3:62}
    for cls,base in arrs.items():
        for k in range(6):
            lo=cls+2*k
            K(f"v_cvt_pk_bf16_f32 v{base+k}, v{w(lo)}, v{w(lo+1)}")
    for s in range(8):
        st=7-s; r=arrs[st%4]+(st//4)*2
        K(f"ds_write_b128 v9, v[{r}:{r+3}] offset:{s*KCS}")
    K("s_waitcnt lgkmcnt(0)\ns_barrier")
    K("s_sub_u32 s38, s38, 1\ns_cmp_lg_u32 s38, 0\ns_cbranch_scc1 L_kloop")
    K("s_barrier")
    K("s_branch L_abr_end")
    P.L+=K.L
    C=Prog()
    C("L_cwave:")
    C("v_subrev_u32 v2, 256, v0")
    C("s_mul_i32 s38, s36, 18\ns_and_b32 s39, s38, 2\ns_and_b32 s38, s38, 0xfffffffc\ns_lshl_b32 s39, s39, 3")
    C("v_mul_u32_u24 v3, 9216, v2")
    def uload(half):
        for r in range(4):
            row=4*half+r; b=28+6*r
            o=row*1152
            if o+16<4096:
                C(f"buffer_load_dwordx4 v[{b}:{b+3}], v3, s[8:11], s38 offen offset:{o}\nbuffer_load_dword v{b+4}, v3, s[8:11], s38 offen offset:{o+16}")
            else:
                C(f"s_add_u32 s56, s38, {o}\nbuffer_load_dwordx4 v[{b}:{b+3}], v3, s[8:11], s56 offen\nbuffer_load_dword v{b+4}, v3, s[8:11], s56 offen offset:16")
    def utrans(half):
        for r in range(4):
            b=28+6*r
            for k in range(5): C(f"v_alignbit_b32 v{b+k}, v{b+min(k+1,4)}, v{b+k}, s39")
        for ch in range(9):
            sel="s57" if ch%2==0 else "s58"
            k=ch//2
            C(f"v_perm_b32 v52, v{34+k}, v{28+k}, {sel}\nv_perm_b32 v53, v{46+k}, v{40+k}, {sel}")
            C(f"ds_write_b64 v4, v[52:53] offset:{UT+ch*UTS+480+8*half}")
    C("s_mov_b32 s57, 0x05040100\ns_mov_b32 s58, 0x07060302")
    C("v_lshlrev_b32 v4, 4, v2")
    uload(0)
    C("v_and_b32 v5, 15, v1\nv_lshlrev_b32 v5, 3, v5")
    C("v_lshrrev_b32 v6, 4, v2\nv_lshlrev_b32 v6, 1, v6")
    C("s_lshl_b32 s56, s36, 5\nv_add_u32 v6, s56, v6")
    C("v_mul_u32_u24 v7, 1152, v6\nv_add_u32 v7, v7, v5")
    C("v_mov_b32 v88, 0\nv_mov_b32 v89, 0\nv_mov_b32 v90, 0\nv_mov_b32 v91, 0")
    C("v_cmp_gt_u32 vcc, 30, v2\ns_and_saveexec_b64 s[60:61], vcc")
    for ch in range(9): C(f"ds_write_b128 v4, v[88:91] offset:{UT+ch*UTS}")
    C("s_mov_b64 exec, s[60:61]")
    utrans(0)
    uload(1)
    C("s_barrier")
    utrans(1)
    for k in range(9): C(f"buffer_load_dwordx2 v[{28+2*k}:{29+2*k}], v5, s[84:87], 0 offen offset:{128*k}")
    for t in range(2):
        for k in range(9): C(f"buffer_load_dwordx2 v[{46+18*t+2*k}:{47+18*t+2*k}], v7, s[8:11], 0 offen offset:{1152*t+128*k}")
    for t in range(2):
        C(f"v_mov_b32 v{88+t}, 0")
        for k in range(18): C(f"v_dot2_f32_bf16 v{88+t}, v{46+18*t+k}, v{28+k}, v{88+t}")
    for sh in (1,2,4,8):
        for t in range(2): C(f"v_add_f32_dpp v{88+t}, v{88+t}, v{88+t} row_ror:{sh} row_mask:0xf bank_mask:0xf")
    for t in range(2): C(f"v_mul_f32_e64 v{88+t}, -v{88+t}, s34")
    for t in range(2): C(f"v_exp_f32 v{88+t}, v{88+t}")
    for t in range(2): C(f"v_add_f32 v{88+t}, 1.0, v{88+t}")
    for t in range(2): C(f"v_rcp_f32 v{88+t}, v{88+t}")
    C(f"v_lshlrev_b32 v6, 2, v6\nv_and_b32 v5, 15, v1\nv_cmp_eq_u32 vcc, 0, v5\ns_and_saveexec_b64 s[60:61], vcc")
    C(f"s_mov_b32 s56, {G_OFF}\nbuffer_store_dwordx2 v[88:89], v6, s[20:23], s56 offen")
    C("s_mov_b64 exec, s[60:61]")
    C("v_and_b32 v5, 15, v1\nv_lshrrev_b32 v6, 4, v1")
    C("s_and_b32 s59, s35, 1\ns_lshl_b32 s56, s59, 8")
    C(f"v_and_b32 v7, 7, v5\nv_mul_u32_u24 v10, {KCS}, v7\nv_lshrrev_b32 v7, 3, v5\nv_sub_u32 v7, v6, v7\nv_lshlrev_b32 v7, 4, v7\nv_add_u32 v10, v10, v7")
    C(f"v_add_u32 v10, {KC+16}, v10\nv_subrev_u32 v10, s56, v10")
    C(f"v_lshlrev_b32 v11, 5, v5\nv_lshl_add_u32 v11, v6, 4, v11")
    C(f"v_lshlrev_b32 v12, 5, v5\nv_lshl_add_u32 v12, v6, 3, v12")
    C(f"v_add_u32 v11, {UT+480-32-192}, v11\nv_subrev_u32 v11, s56, v11")
    C(f"v_add_u32 v13, {UT+480}, v12")
    C(f"s_bfe_u32 s62, s35, 0x10001\ns_lshl_b32 s56, s62, 12\nv_lshlrev_b32 v14, 4, v1\nv_add_u32 v14, s56, v14\nv_add_u32 v14, {RED}, v14")
    C(f"s_lshl_b32 s63, s37, 12\ns_add_u32 s63, s63, {AT_OFF}")
    C("s_lshl_b32 s64, s37, 1\nv_mov_b32 v15, 0")
    C("s_waitcnt lgkmcnt(0)\ns_barrier\ns_barrier")
    C("s_mov_b32 s38, 9")
    C("s_cmp_eq_u32 s62, 1\ns_cbranch_scc1 L_cloop1")
    for y in range(2):
        Q=QY[y]; na=max(Q)+1
        C(f".p2align 3\nL_cloop{y}:")
        C("buffer_load_ushort v16, v15, s[80:83], s64 offen")
        def reads(sp):
            base=64*(sp&1); L=[]
            for i in range(na):
                L.append(f"ds_read_b128 a[{base+4*i}:{base+4*i+3}], v10 offset:{32*(126-16*i-2*sp)}")
                L.append(f"ds_read_b128 a[{base+32+4*i}:{base+32+4*i+3}], v11 offset:{512*i+192-64*sp}")
            return L
        for x in reads(0): C(x)
        for sp in range(4):
            base=64*(sp&1)
            ms=sorted([(i,q) for q in Q for i in range(q+1)], key=lambda t:(max(t[0],t[1]-t[0]),t[1]))
            seen=set(); nxt=reads(sp+1) if sp<3 else []
            for n,(i,q) in enumerate(ms):
                a=32+4*Q.index(q)
                cc="0" if (sp==0 and q not in seen) else f"v[{a}:{a+3}]"
                seen.add(q)
                C(f"v_mfma_f32_16x16x32_bf16 v[{a}:{a+3}], a[{base+4*i}:{base+4*i+3}], a[{base+32+4*(q-i)}:{base+32+4*(q-i)+3}], {cc}")
                if n<len(nxt): C(nxt[n])
        C(f"s_cmp_eq_u32 s59, 0\ns_cbranch_scc1 L_cfin{y}")
        C("s_nop 7")
        for k in range(4): C(f"ds_write_b128 v14, v[{32+4*k}:{35+4*k}] offset:{1024*k}")
        C("s_waitcnt vmcnt(0) lgkmcnt(0)\ns_barrier")
        C(f"s_branch L_cnext{y}")
        C(f"L_cfin{y}:")
        for k,q in enumerate(Q): C(f"ds_read_b64 v[{64+2*k}:{65+2*k}], v13 offset:{512*q}")
        C("s_barrier")
        for k in range(4): C(f"ds_read_b128 v[{48+4*k}:{51+4*k}], v14 offset:{1024*k}")
        C("v_lshlrev_b32 v16, 16, v16")
        for k,q in enumerate(Q):
            a=32+4*k
            C(f"v_lshlrev_b32 v72, 16, v{64+2*k}\nv_and_b32 v73, 0xffff0000, v{64+2*k}\nv_lshlrev_b32 v74, 16, v{65+2*k}\nv_and_b32 v75, 0xffff0000, v{65+2*k}")
            for r in range(4): C(f"v_fmac_f32 v{a+r}, v{72+r}, v16")
            for r in range(4): C(f"v_add_f32 v{a+r}, v{a+r}, v{48+4*k+r}")
            C(f"v_cvt_pk_bf16_f32 v{76+2*k}, v{a}, v{a+1}\nv_cvt_pk_bf16_f32 v{77+2*k}, v{a+2}, v{a+3}")
            C(f"buffer_store_dwordx2 v[{76+2*k}:{77+2*k}], v12, s[20:23], s63 offen offset:{512*q}")
        C("s_waitcnt lgkmcnt(0)")
        C(f"L_cnext{y}:")
        C(f"v_add_u32 v11, {UTS}, v11\nv_add_u32 v13, {UTS}, v13\ns_add_u32 s63, s63, 4096\ns_add_u32 s64, s64, 2")
        C(f"s_sub_u32 s38, s38, 1\ns_cmp_eq_u32 s38, 0\ns_cbranch_scc1 L_abr_end")
        C(f"s_barrier\ns_branch L_cloop{y}")
    P.L+=C.L
    P("L_abr_end:")
```

```python
import re
TRANS = ("v_exp_f32","v_log_f32","v_rcp_f32","v_rsq_f32","v_sqrt_f32","v_sin_f32","v_cos_f32","v_rcp_iflag_f32")
REG_RE = re.compile(r'(?<![\w.])(-?)(?:abs\()?([vas])(?:\[(\d+):(\d+)\]|(\d+))(?![\w])')
def regs_of(op):
    op = op.strip()
    out = []
    if op in ("vcc",): return [("s",106),("s",107)]
    if op == "vcc_lo": return [("s",106)]
    if op == "vcc_hi": return [("s",107)]
    if op == "exec": return [("s",126),("s",127)]
    if op == "exec_lo": return [("s",126)]
    if op == "exec_hi": return [("s",127)]
    if op == "m0": return [("s",124)]
    m = re.fullmatch(r'[-|]*(?:abs\(|neg\()?([vas])(?:\[(\d+):(\d+)\]|(\d+))\)?\|?', op)
    if m:
        k = m.group(1)
        if m.group(4) is not None: return [(k,int(m.group(4)))]
        return [(k,i) for i in range(int(m.group(2)), int(m.group(3))+1)]
    return []
def split_ops(s):
    ops=[]; depth=0; cur=""
    for ch in s:
        if ch in "[(": depth+=1
        if ch in "])": depth-=1
        if ch=="," and depth==0: ops.append(cur.strip()); cur=""
        else: cur+=ch
    if cur.strip(): ops.append(cur.strip())
    return ops
VCC=[("s",106),("s",107)]; EXEC=[("s",126),("s",127)]; M0=("s",124); SCC=("scc",0)
class I:
    __slots__=("text","mn","kind","rd","wr","tag","passes","srcc","ab","wide","dmalds")
    def __init__(self, text, tag=None):
        self.text=text; self.tag=tag; self.passes=0; self.srcc=set(); self.ab=set(); self.wide=False; self.dmalds=False
        t=text.split(";")[0].strip()
        if t.endswith(":") or t.startswith("."):
            self.mn=t; self.kind="label" if t.endswith(":") else "dir"; self.rd=set(); self.wr=set(); return
        parts=t.split(None,1); mn=parts[0]; self.mn=mn
        rest=parts[1] if len(parts)>1 else ""
        ops=split_ops(rest)
        mods=""
        if ops:
            sp=ops[-1].split(None,1)
            if len(sp)>1 and not ops[-1].startswith(("hwreg","vmcnt","lgkmcnt","expcnt")):
                ops[-1]=sp[0]; mods=sp[1]
        R=lambda i: regs_of(ops[i]) if i<len(ops) else []
        allr=lambda a: [x for i in range(a,len(ops)) for x in R(i)]
        base=re.sub(r'_(e32|e64|dpp|sdwa)$','',mn)
        rd=[];wr=[]
        if mn.startswith("v_mfma"):
            self.kind="mfma"; wr=R(0); rd=R(1)+R(2)+R(3); self.srcc=set(R(3)); self.ab=set(R(1)+R(2))
            self.passes = 8 if "32x32x16" in mn else (4 if "16x16x32" in mn else None)
            assert self.passes, mn
        elif mn.startswith("v_cmp"):
            self.kind="valu"; wr=R(0); rd=allr(1)
            if mn.startswith("v_cmpx"): wr+=EXEC
        elif base in ("v_readfirstlane_b32","v_readlane_b32"):
            self.kind="valu"; wr=R(0); rd=allr(1)
        elif base.startswith("v_permlane") and "swap" in base:
            self.kind="valu"; wr=R(0)+R(1); rd=R(0)+R(1)
        elif mn.startswith("v_"):
            self.kind="valu"; wr=R(0); rd=allr(1)
            if base in ("v_fmac_f32","v_dot2c_f32_bf16","v_writelane_b32","v_pk_fmac_f16") or "dpp" in mn or "row_" in mods or "quad_perm" in mods or "wave_" in mods: rd+=R(0)
            if base in ("v_add_co_u32","v_sub_co_u32","v_addc_co_u32","v_subrev_co_u32"): wr+=R(1); rd=allr(2)
            if base=="v_cndmask_b32" and len(ops)==3: rd+=VCC
            if base=="v_nop": pass
        elif mn.startswith("ds_"):
            self.kind="ds"
            if mn.startswith(("ds_read","ds_bpermute","ds_permute","ds_swizzle")) or "_rtn" in mn:
                wr=R(0); rd=allr(1)
                if "d16" in mn: rd+=R(0)
            else: rd=allr(0)
        elif mn.startswith(("buffer_","global_")):
            self.kind="vmem"
            lds = bool(re.search(r'\blds\b', mods)) or "_lds_" in mn
            if mn in ("buffer_wbl2","buffer_inv"): pass
            elif lds: rd=allr(0)+[M0]; self.dmalds=True
            elif "_load" in mn:
                wr=R(0); rd=allr(1)
                if "d16" in mn: rd+=R(0)
            elif "atomic" in mn and re.search(r'\bsc0\b', mods):
                if mn.startswith("buffer"): wr=R(0); rd=allr(0)
                else: wr=R(0); rd=allr(1)
            else:
                rd=allr(0)
                if re.search(r'x[34]$', mn):
                    self.wide=True
                    self.srcc=set(R(0) if mn.startswith("buffer") else R(1))
        elif mn.startswith(("s_load","s_buffer_load","s_memtime","s_memrealtime")):
            self.kind="smem"; wr=R(0); rd=allr(1)
        elif mn in ("s_waitcnt","s_barrier","s_nop","s_setprio","s_sleep","s_endpgm","s_branch") or mn.startswith("s_cbranch"):
            self.kind="sopp"
            if mn.startswith("s_cbranch_scc"): rd=[SCC]
            if mn.startswith("s_cbranch_vcc"): rd=VCC
            if mn.startswith("s_cbranch_exec"): rd=EXEC
        elif mn.startswith(("s_cmp","s_bitcmp")):
            self.kind="salu"; rd=allr(0); wr=[SCC]
        elif mn.startswith("s_"):
            self.kind="salu"; wr=R(0); rd=allr(1)
            if "saveexec" in mn: wr+=EXEC; rd+=EXEC
            if mn.startswith(("s_cselect","s_addc","s_subb","s_cmov")): rd+=[SCC]
            if mn in ("s_addk_i32","s_mulk_i32"): rd+=R(0)
            if not mn.startswith(("s_mov","s_cselect","s_mul","s_getreg","s_getpc","s_movk","s_cmov","s_brev")): wr+=[SCC]
        else:
            raise ValueError("unknown instr "+text)
        self.rd=set(rd); self.wr=set(wr)
    @property
    def base(self): return re.sub(r'_(e32|e64|dpp|sdwa)$','',self.mn)
    @property
    def trans(self): return self.base in TRANS
    def states(self):
        if self.kind in ("label","dir"): return 0
        if self.mn=="s_nop": return int(self.text.split()[1],0)+1
        return 1
class WaitVM:
    def __init__(self, pred): self.pred=pred
class WaitLG:
    def __init__(self, pred): self.pred=pred
class Prog:
    def __init__(self): self.L=[]
    def __call__(self, text, tag=None):
        for line in text.split("\n"):
            line=line.strip()
            if line: self.L.append(I(line, tag))
    def waitvm(self, pred): self.L.append(WaitVM(pred))
    def waitlg(self, pred=lambda t: True): self.L.append(WaitLG(pred))
    def extend(self, items):
        for x in items:
            if isinstance(x,(I,WaitVM,WaitLG)): self.L.append(x)
            elif isinstance(x,tuple): self(x[0],x[1])
            else: self(x)
def wait_text(vm,lg):
    p=[]
    if vm is not None: p.append(f"vmcnt({min(vm,63)})")
    if lg is not None: p.append(f"lgkmcnt({min(lg,15)})")
    return "s_waitcnt "+" ".join(p)
def _target(x):
    if isinstance(x,I) and (x.mn=="s_branch" or x.mn.startswith("s_cbranch")): return x.text.split()[1]
    return None
def _merge(a,b):
    n=max(len(a),len(b)); out=[]
    for k in range(n,0,-1):
        ea=a[-k] if k<=len(a) else None; eb=b[-k] if k<=len(b) else None
        if ea is None: out.append(eb)
        elif eb is None: out.append(ea)
        else: out.append((ea[0]|eb[0], ea[1]|eb[1], ea[2]|eb[2]))
    return out
def insert_waits(L):
    states={}
    for it in range(6):
        out,new=_insert_waits(L,states)
        if new==states: return out
        states=new
    raise RuntimeError("wait analysis did not converge")
def _insert_waits(L, seed):
    out=[]; vm=[]; lg=[]; dead=False
    states={k:(list(v[0]),list(v[1])) for k,v in seed.items()}
    keep=lambda q,n: (q[len(q)-n:] if n<len(q) else q) if n else []
    sm=lambda q: any("smem" in e[2] for e in q)
    for x in L:
        if isinstance(x,WaitVM):
            idx=[i for i,e in enumerate(vm) if any(x.pred(t) for t in e[1])]
            if idx:
                n=min(len(vm)-1-max(idx),63); out.append(I(wait_text(n,None))); vm=keep(vm,n)
            continue
        if isinstance(x,WaitLG):
            idx=[i for i,e in enumerate(lg) if any(x.pred(t) for t in e[1])]
            if idx:
                n=0 if sm(lg) else min(len(lg)-1-max(idx),15)
                out.append(I(wait_text(None,n))); lg=keep(lg,n)
            continue
        if x.kind=="label":
            nm=x.text.strip()[:-1]
            if nm in states:
                sv,sl=states[nm]
                if dead: vm,lg=list(sv),list(sl)
                else: vm,lg=_merge(vm,sv),_merge(lg,sl)
            elif dead: vm,lg=[],[]
            dead=False
            out.append(x); continue
        if x.mn=="s_waitcnt":
            m=re.search(r'vmcnt\((\d+)\)',x.text)
            if m: vm=keep(vm,int(m.group(1)))
            m=re.search(r'lgkmcnt\((\d+)\)',x.text)
            if m:
                n=int(m.group(1))
                if not (sm(lg) and n>0): lg=keep(lg,n)
            out.append(x); continue
        touched=x.rd|x.wr
        nv=nl=None
        idx=[i for i,e in enumerate(vm) if e[0]&touched]
        if idx: nv=min(len(vm)-1-max(idx),63)
        idx=[i for i,e in enumerate(lg) if e[0]&touched]
        if idx: nl=0 if sm(lg) else min(len(lg)-1-max(idx),15)
        if nv is not None or nl is not None:
            out.append(I(wait_text(nv,nl)))
            if nv is not None: vm=keep(vm,nv)
            if nl is not None: lg=keep(lg,nl)
        out.append(x)
        if x.kind=="vmem" and x.mn not in ("buffer_inv",): vm=vm+[(frozenset(x.wr),frozenset([x.tag]),frozenset(["vmem"]))]
        elif x.kind=="ds": lg=lg+[(frozenset(x.wr),frozenset([x.tag]),frozenset(["ds"]))]
        elif x.kind=="smem": lg=lg+[(frozenset(x.wr),frozenset([x.tag]),frozenset(["smem"]))]
        if len(vm)>63:
            assert not vm[0][0] , "vmcnt overflow near "+x.text
            vm=vm[1:]
        if len(lg)>40: lg=lg[-40:] if not any(e[0] for e in lg[:-40]) else lg
        t=_target(x)
        if t is not None:
            if t in states: states[t]=(_merge(states[t][0],vm),_merge(states[t][1],lg))
            else: states[t]=(list(vm),list(lg))
        if x.mn in ("s_branch","s_endpgm"): dead=True
    o2=[]
    for x in out:
        if x.mn=="s_waitcnt" and o2 and o2[-1].mn=="s_waitcnt":
            g=lambda t,k: (lambda m: int(m.group(1)) if m else None)(re.search(k+r'\((\d+)\)',t))
            mn=lambda a,b: b if a is None else (a if b is None else min(a,b))
            o2[-1]=I(wait_text(mn(g(o2[-1].text,"vmcnt"),g(x.text,"vmcnt")),mn(g(o2[-1].text,"lgkmcnt"),g(x.text,"lgkmcnt"))))
        else: o2.append(x)
    return o2,states
MF_RAW={4:8,8:12}; MF_COV={4:6,8:10}; MF_WAR={4:3,8:7}
def need_states(p,c):
    n=0
    isv=lambda s:{r for r in s if r[0] in "va"}
    iss=lambda s:{r for r in s if r[0]=="s"}
    if p.kind=="valu":
        w=p.wr
        if c.kind=="mfma" and (w&c.rd): n=max(n,2)
        if p.trans and c.kind=="valu" and not c.trans and (w&c.rd): n=max(n,1)
        if p.trans and c.kind in ("vmem","ds","mfma") and (w&c.rd): n=max(n,1)
        if c.kind=="valu":
            b=c.base
            if b in ("v_readfirstlane_b32","v_readlane_b32") and (isv(w)&c.rd): n=max(n,1)
            if b.startswith("v_permlane") and (isv(w)&c.rd): n=max(n,2)
            if ("dpp" in c.mn or "row_" in c.text or "quad_perm" in c.text or "wave_" in c.text) and (isv(w)&c.rd): n=max(n,2)
            if iss(w)&c.rd: n=max(n,4 if b in ("v_readlane_b32","v_writelane_b32") else 2)
            if ("op_sel" in p.text or "sdwa" in p.mn or "dst_sel" in p.text) and (w&(c.rd|c.wr)): n=max(n,1)
        if c.kind=="vmem" and (iss(w)&c.rd): n=max(n,5)
        if c.kind in ("salu","smem","sopp") and (iss(w)&c.rd): n=max(n,4)
        if set(EXEC)&w: n=max(n,5)
        if p.base.startswith("v_dot") and ((c.rd|c.wr)&w) and c.base!=p.base: n=max(n,3)
    if p.kind=="mfma":
        d=p.wr
        if c.kind=="mfma":
            if c.ab&d: n=max(n,MF_RAW[p.passes])
            if c.srcc&d:
                if not (c.srcc==d and c.passes==p.passes): n=max(n,MF_COV[p.passes])
            elif c.wr&d: n=max(n,MF_RAW[p.passes])
        elif c.kind in ("valu","vmem","ds"):
            if (c.rd|c.wr)&d: n=max(n,MF_RAW[p.passes])
        if c.kind=="valu" and (c.wr&p.srcc): n=max(n,MF_WAR[p.passes])
    if p.kind=="salu" and M0 in p.wr and (c.dmalds or "addtid" in c.mn): n=max(n,1)
    if p.kind=="vmem" and p.wide and (c.wr&p.srcc): n=max(n,2 if c.kind=="valu" else 1)
    return n
def insert_nops(L):
    srcs={}
    for k,x in enumerate(L):
        t=_target(x)
        if t: srcs.setdefault(t,[]).append(k)
    extra=[0]*len(L)
    def look(k,dist,c,seen):
        need=0
        while k>=0 and dist<20:
            p=L[k]
            if p.kind=="label":
                nm=p.text.strip()[:-1]
                for s_ in srcs.get(nm,[]):
                    if (s_,dist) not in seen:
                        seen.add((s_,dist)); need=max(need,look(s_,dist,c,seen))
                if k>0 and L[k-1].mn in ("s_branch","s_endpgm"): return need
            elif p.kind!="dir":
                n=need_states(p,c)
                if n>dist: need=max(need,n-dist)
                dist+=p.states()+extra[k]
            k-=1
        return need
    out=[]
    for k,c in enumerate(L):
        if c.kind not in ("label","dir"):
            need=look(k-1,0,c,set()); extra[k]=need
            while need>0:
                n=min(need,16); out.append(I(f"s_nop {n-1}")); need-=n
        out.append(c)
    return out
def finalize(P):
    L=insert_nops(insert_waits(P.L))
    return L
def text(L): return "\n".join(("" if x.kind=="label" else "  ")+x.text for x in L)
def stats(L):
    from collections import Counter
    c=Counter(x.kind if x.mn not in ("s_nop","s_waitcnt","s_barrier") else x.mn for x in L)
    return dict(c)
def merge(main, fill, start=0, end=None):
    end=len(main) if end is None else end
    n=end-start
    for i,x in enumerate(fill):
        main[start+min(n-1,(i*n)//len(fill))].append(x)
```

```python
from asmfw import *
RING=0; GRP=8192
BIAS=57344
ACT=61440
LDS_BYTES=163840
PART_SLICE=16*147456
LOG2E=0x3fb8aa3b
class Cfg:
    R=7; BP=1; DIST=2; NB=4; init_cap=2; store_mod=""; stamp=False; dma_pos=1; prio=False; x_nomish=False; x_novm=False; x_nobar=False; x_nodma=False; x_nost=False
def srd(P, base, ptr, size):
    P(f"s_mov_b32 s{base}, s{ptr}\ns_mov_b32 s{base+1}, s{ptr+1}\ns_mov_b32 s{base+2}, {size}\ns_mov_b32 s{base+3}, 0x20000")
def mish_stream(acc, stg, tmp):
    out=[]
    for e0 in range(0,16,4):
        a=[acc+e0+i for i in range(4)]
        t=[tmp+i for i in range(4)]; u=[tmp+4+i for i in range(4)]
        for i in range(4): out.append(f"v_mul_f32_e64 v{t[i]}, v{a[i]}, s34")
        for i in range(4): out.append(f"v_exp_f32_e64 v{t[i]}, v{t[i]}")
        for i in range(4): out.append(f"v_fma_f32 v{u[i]}, v{t[i]}, 0.5, 1.0")
        for i in range(4): out.append(f"v_fma_f32 v{u[i]}, v{t[i]}, v{u[i]}, 1.0")
        for i in range(4): out.append(f"v_rcp_f32_e64 v{u[i]}, v{u[i]}")
        for i in range(4): out.append(f"v_fma_f32 v{t[i]}, -v{a[i]}, v{u[i]}, v{a[i]}")
        out.append(f"v_cvt_pk_bf16_f32 v{stg+e0//2}, v{t[0]}, v{t[1]}")
        out.append(f"v_cvt_pk_bf16_f32 v{stg+e0//2+1}, v{t[2]}, v{t[3]}")
    return out
def mlp_body(P, c):
    R,BP,DIST,NB=c.R,c.BP,c.DIST,c.NB
    ACC=[32,48]; TMP=64; STG=80
    P("s_load_dwordx2 s[4:5], s[0:1], 0")
    P("s_load_dwordx4 s[36:39], s[0:1], 64")
    P("s_load_dwordx2 s[40:41], s[0:1], 80")
    P("s_load_dwordx2 s[42:43], s[0:1], 112")
    P("v_and_b32 v1, 63, v0")
    P("v_lshrrev_b32 v13, 6, v0")
    P("s_and_b32 s44, s2, 7\ns_lshr_b32 s45, s2, 3")
    P("v_readfirstlane_b32 s35, v13")
    P("s_and_b32 s46, s44, 1\ns_lshl_b32 s46, s46, 3\ns_and_b32 s47, s45, 7\ns_add_u32 s46, s46, s47")
    P("s_lshr_b32 s47, s44, 1\ns_mul_i32 s47, s47, 3\ns_lshr_b32 s45, s45, 3\ns_add_u32 s47, s47, s45")
    P("s_mul_i32 s28, s47, 768\ns_mul_i32 s29, s47, 442368\ns_mul_i32 s30, s46, 147456")
    P("s_lshl_b32 s31, s47, 4\ns_add_u32 s31, s31, s46\ns_mul_i32 s31, s31, 147456")
    P("s_lshl_b32 s32, s35, 10")
    P(f"s_mov_b32 s34, {LOG2E}")
    P("v_lshrrev_b32 v14, 3, v1")
    P("v_and_b32 v15, 7, v1")
    P("v_lshl_add_u32 v16, v13, 3, v14")
    P("v_lshrrev_b32 v17, 1, v14")
    P("v_and_b32 v18, 1, v17\nv_lshlrev_b32 v18, 2, v18\nv_xor_b32 v18, v18, v15\nv_lshlrev_b32 v18, 4, v18")
    P("v_mul_u32_u24 v4, 9216, v16\nv_add_u32 v4, v4, v18")
    P("v_mul_u32_u24 v19, 1152, v16\nv_add_u32 v5, v19, v18")
    P("v_and_b32 v20, 1, v13\nv_lshl_add_u32 v20, v20, 2, v17\nv_xor_b32 v20, v20, v15\nv_lshl_add_u32 v6, v20, 4, v19")
    P("s_waitcnt lgkmcnt(0)")
    srd(P,8,4,2359296); srd(P,12,36,5308416); srd(P,16,40,5308416); srd(P,20,42,0x10000000); srd(P,24,38,9216)
    def wdma(G):
        slot=G%R
        if G<54:
            t,gi=divmod(G,9); so=t*128+gi*64*9216; sb,vo,sr="s28","v4","s[12:15]"
        else:
            t,gi=divmod(G-54,6); so=t*128+gi*64*1152; sb,vo,sr="s29","v5","s[16:19]"
        return [f"s_add_u32 m0, s32, {RING+slot*GRP}", f"s_add_u32 s33, {sb}, {so}", (f"buffer_load_dwordx4 {vo}, {sr}, s33 offen lds",("W",G))]
    def xdma(b,half):
        return [f"s_add_u32 m0, s32, {ACT+(b%6)*16384+half*8192}", f"s_add_u32 s33, s30, {half*64*1152+b*128}", (f"buffer_load_dwordx4 v6, s[8:11], s33 offen lds",("X",b))]
    pend=[]
    for i in range(max(R,6)):
        if i<R: pend.append(wdma(i))
        if i<6: pend.append(xdma(i,0)); pend.append(xdma(i,1))
    ncap=3*(BP+1)+c.init_cap
    P("v_lshlrev_b32 v21, 1, v0")
    P("s_mul_i32 s33, s47, 768")
    P("buffer_load_ushort v22, v21, s[24:27], s33 offen", ("B",0))
    for g in pend[:ncap]: P.extend(g)
    pend=pend[ncap:]
    if c.codepf:
        P("s_getpc_b64 s[48:49]")
        P("v_lshlrev_b32 v23, 7, v0")
        P(f"v_min_u32 v23, {c.codepf}, v23")
        P("global_load_dword v24, v23, s[48:49]", ("PF",0))
    P("v_lshrrev_b32 v14, 5, v1")
    P("v_bfe_u32 v15, v1, 2, 2")
    P("v_bfe_u32 v16, v1, 4, 1\nv_lshlrev_b32 v16, 5, v16")
    P("v_and_b32 v17, 3, v1\nv_lshl_add_u32 v16, v17, 3, v16")
    P("v_lshrrev_b32 v17, 2, v13")
    P("v_lshrrev_b32 v18, 1, v15\nv_xor_b32 v18, v18, v17\nv_lshl_add_u32 v16, v18, 6, v16")
    P("v_lshl_add_u32 v18, v14, 3, v15\nv_lshl_add_u32 v2, v18, 7, v16")
    P("v_lshl_add_u32 v18, v14, 2, v15\nv_lshl_add_u32 v3, v18, 7, v16")
    P("v_and_b32 v18, 3, v13")
    P(f"v_mul_u32_u24 v9, 24576, v18\nv_lshl_add_u32 v9, v1, 4, v9\nv_add_u32 v9, {ACT}, v9")
    P("v_lshl_add_u32 v10, v17, 11, v9")
    P(f"v_lshlrev_b32 v11, 7, v17\nv_lshl_add_u32 v11, v14, 4, v11\nv_add_u32 v11, {BIAS}, v11")
    P("v_mul_u32_u24 v12, 36864, v18\nv_lshl_add_u32 v12, v1, 4, v12\nv_lshl_add_u32 v12, v17, 11, v12")
    P("v_and_b32 v19, 31, v1\nv_lshl_add_u32 v19, v18, 5, v19")
    P("v_bfe_u32 v20, v19, 1, 3\nv_xor_b32 v20, v20, v14\nv_lshlrev_b32 v20, 4, v20\nv_lshl_add_u32 v20, v19, 7, v20")
    P(f"v_add_u32 v64, {ACT}, v20")
    for j in range(1,4): P(f"v_xor_b32 v{64+j}, {32*j}, v64")
    for j in range(4): P(f"v_add_u32 v{68+j}, 65536, v{64+j}")
    P("v_lshlrev_b32 v22, 16, v22")
    P(f"v_lshlrev_b32 v21, 2, v0\nv_cmp_gt_u32 vcc, 384, v0\ns_and_saveexec_b64 s[50:51], vcc")
    P(f"ds_write_b32 v21, v22 offset:{BIAS}")
    P("s_mov_b64 exec, s[50:51]")
    if c.prio:
        P("s_cmp_ge_u32 s35, 4\ns_cbranch_scc0 L_noprio\ns_setprio 1\nL_noprio:")
    NS=432
    pre=[[] for _ in range(NS+1)]; post=[[] for _ in range(NS+1)]
    def trread(k):
        if k>=NS: return []
        G,j=divmod(k,4); b=144+(k%NB)*4; off=RING+(G%R)*GRP+j*2048
        if k<216: return [(f"ds_read_b64_tr_b16 a[{b}:{b+1}], v2 offset:{off}",("rd",k)),(f"ds_read_b64_tr_b16 a[{b+2}:{b+3}], v2 offset:{off+512}",("rd",k))]
        return [(f"ds_read_b64_tr_b16 a[{b}:{b+1}], v3 offset:{off}",("rd",k)),(f"ds_read_b64_tr_b16 a[{b+2}:{b+3}], v3 offset:{off+1024}",("rd",k))]
    def xread(k):
        b,j=divmod(k,4); o=(b%6)*16384
        reg=64+j if o<65536 else 68+j
        return [(f"ds_read_b128 a[{4*k}:{4*k+3}], v{reg} offset:{o%65536}",("xr",k))]
    def biasread(t):
        a=ACC[t&1]
        return [f"ds_read_b128 v[{a+4*q}:{a+4*q+3}], v11 offset:{t*256+q*32}" for q in range(4)]
    def actread(k): return [(f"ds_read_b128 a[{4*k}:{4*k+3}], v9 offset:{k*1024}",("ar",k))]
    dmaq=list(pend)
    nextW=R; nextX=6
    period=4*BP
    for k in range(0,NS,period):
        G=k//4
        lim=G+BP
        assert all(g[-1][1][1]>lim for g in dmaq), (k, [g[-1][1] for g in dmaq])
        if not (c.x_novm and k>=48): pre[k].append(WaitVM(lambda t,lim=lim: t is not None and t[0] in ("W","X") and t[1]<=lim))
        elif k%64==0: pre[k].append("s_waitcnt vmcnt(20)")
        if k==0: pre[k].append(WaitLG(lambda t: True))
        if k==232: pre[k].append(WaitLG(lambda t: t==("aw",5)))
        if not (c.x_nobar and k>=48): pre[k].append("s_barrier")
        if k==0:
            if c.stamp: pre[k].append("s_memtime s[92:93]")
            for kk in range(DIST): pre[k]+=xread(kk)+trread(kk)
            pre[k]+=biasread(0)
        while nextW<108 and nextW-R<G: dmaq.append(wdma(nextW)); nextW+=1
        while nextX<9 and nextX-6<G: dmaq.append(xdma(nextX,0)); dmaq.append(xdma(nextX,1)); nextX+=1
        dmaq.sort(key=lambda g: g[-1][1][1])
        n=len(dmaq) if k>=48 else min(len(dmaq),period)
        for i in range(n):
            s=k+min(period-1,(c.dma_pos+i*(period//max(n,1))) if k>=48 else i)
            dd=dmaq.pop(0)
            if not (c.x_nodma and k>=48): post[s].append(("DMA",dd))
    assert not dmaq
    for k in range(NS):
        post[k]=[x for x in trread(k+DIST)]+post[k]
        if k+DIST<36: post[k]=xread(k+DIST)+post[k]
    fill=[[] for _ in range(NS+1)]
    for t in range(6):
        ms=mish_stream(ACC[t&1],STG,TMP if t>0 else 72)
        if c.x_nomish: ms=ms[:2]
        wr=[(f"ds_write_b128 v10, v[{STG}:{STG+3}] offset:{t*4096}",("aw",t)),(f"ds_write_b128 v10, v[{STG+4}:{STG+7}] offset:{t*4096+1024}",("aw",t))]
        if t<5:
            s0=36*(t+1)
            merge(fill,ms,s0+1,s0+31); fill[s0+31]+=wr
            fill[s0+1 if False else s0+32]+=[]
            if t+2<6: merge(fill,biasread(t+2),s0+32,s0+35)
        else:
            merge(fill,ms,217,230); fill[230]+=wr
    merge(fill,biasread(1),28,33)
    for kk in range(16): fill[190+kk]+=actread(kk)
    for kk in range(16,20): fill[224+kk-16]+=actread(kk)
    for kk in range(20,24): fill[232+(kk-20)//2]+=actread(kk)
    def epi(i):
        a=ACC[i&1]; o=88
        L=[f"v_cvt_pk_bf16_f32 v{o+j}, v{a+2*j}, v{a+2*j+1}" for j in range(4)]
        L+=[f"s_add_u32 s33, s31, {i*4096}", (f"buffer_store_dwordx4 v[{o}:{o+3}], v12, s[20:23], s33 offen {c.store_mod}",("ST",i))]
        L+=[f"v_cvt_pk_bf16_f32 v{o+j}, v{a+2*j}, v{a+2*j+1}" for j in range(4,8)]
        L+=[f"s_add_u32 s33, s31, {i*4096}", (f"buffer_store_dwordx4 v[{o+4}:{o+7}], v12, s[20:23], s33 offen offset:1024 {c.store_mod}",("ST",i))]
        return L
    for i in range(8):
        s0=216+24*(i+1)
        e=epi(i)
        if c.x_nost: continue
        fill[s0+2]+=e[0:2]; fill[s0+3]+=e[2:4]; fill[s0+4]+=e[4:6]; fill[s0+6]+=e[6:8]; fill[s0+7]+=e[8:10]; fill[s0+8]+=e[10:12]
    if c.stamp:
        pre[36].append("s_memtime s[94:95]"); pre[216].append("s_memtime s[96:97]")
    P(".p2align 3")
    for k in range(NS):
        P.extend(pre[k])
        b=144+(k%NB)*4
        if k<216:
            t,kk=divmod(k,36); a=ACC[t&1]; cc=f"v[{a}:{a+15}]"
        else:
            i,kk=divmod(k-216,24); a=ACC[i&1]; cc=f"v[{a}:{a+15}]" if kk else "0"
        P(f"v_mfma_f32_32x32x16_bf16 v[{a}:{a+15}], a[{b}:{b+3}], a[{4*kk}:{4*kk+3}], {cc}")
        dm=[x for x in post[k] if isinstance(x,tuple) and x[0]=="DMA"]
        P.extend([x for x in post[k] if not (isinstance(x,tuple) and x[0]=="DMA")])
        P.extend(fill[k])
        for x in dm: P.extend(x[1])
    P.extend(epi(8))
```

```python
import sys, argparse
from asmfw import *
import mlp, abr
HDR=open("gated_mix__ssm_conv_s4d__dense_activation_mish__prompt.s.ref").read().split("; Override launch")[0]
def kernel(name, L): return f".globl {name}\n.p2align 8\n.type {name},@function\n{name}:\n{text(L)}\n"
def desc(name, vgpr, accum, sgpr=102):
    return f""".p2align 6
.amdhsa_kernel {name}
  .amdhsa_next_free_vgpr {vgpr}
  .amdhsa_next_free_sgpr {sgpr}
  .amdhsa_accum_offset {accum}
  .amdhsa_group_segment_fixed_size 0
  .amdhsa_kernarg_size 120
  .amdhsa_user_sgpr_count 2
  .amdhsa_user_sgpr_kernarg_segment_ptr 1
  .amdhsa_system_sgpr_workgroup_id_x 1
.end_amdhsa_kernel
"""
STAMP_OFF=0x8000000
def stamp_epi(P, nw, srd):
    P(f"""s_waitcnt vmcnt(0) lgkmcnt(0)
s_memrealtime s[98:99]
s_memtime s[100:101]
s_getreg_b32 s66, hwreg(HW_REG_XCC_ID)
s_waitcnt lgkmcnt(0)
s_mov_b64 exec, -1
v_lshrrev_b32 v90, 6, v0
s_mul_i32 s67, s2, {nw}
v_add_u32 v90, s67, v90
v_lshlrev_b32 v90, 5, v90
v_add_u32 v90, {STAMP_OFF}, v90
s_sub_u32 s92, s92, s90
s_sub_u32 s94, s94, s90
s_sub_u32 s96, s96, s90
v_mov_b32 v80, s88
v_mov_b32 v81, s98
v_mov_b32 v82, s90
v_mov_b32 v83, s100
v_mov_b32 v84, s66
v_mov_b32 v85, s92
v_mov_b32 v86, s94
v_mov_b32 v87, s96
v_and_b32 v91, 63, v0
v_cmp_eq_u32 vcc, 0, v91
s_and_saveexec_b64 s[68:69], vcc
buffer_store_dwordx4 v[80:83], v90, {srd}, 0 offen
buffer_store_dwordx4 v[84:87], v90, {srd}, 0 offen offset:16
s_waitcnt vmcnt(0)""")
def reduce_kernel(c):
    P=Prog()
    NP=12
    P("s_cmp_ge_u32 s2, 576\ns_cbranch_scc1 L_red_end")
    P("s_load_dwordx2 s[4:5], s[0:1], 96\ns_load_dwordx2 s[6:7], s[0:1], 112")
    P("s_lshl_b32 s3, s2, 8\nv_add_u32 v1, s3, v0\nv_lshlrev_b32 v2, 4, v1")
    P("s_waitcnt lgkmcnt(0)")
    mlp.srd(P,8,6,0x10000000); mlp.srd(P,12,4,2359296)
    for s in range(NP):
        P(f"s_mov_b32 s16, {s*mlp.PART_SLICE}\nbuffer_load_dwordx4 v[{16+4*s}:{19+4*s}], v2, s[8:11], s16 offen")
    P("v_lshrrev_b32 v3, 6, v1")
    P("v_readfirstlane_b32 s17, v3")
    P("s_and_b32 s18, s17, 1\ns_lshr_b32 s17, s17, 1")
    P("s_mul_hi_u32 s19, s17, 238609295\ns_mul_i32 s20, s19, 18\ns_sub_u32 s20, s17, s20")
    P("v_and_b32 v4, 31, v0\ns_lshl_b32 s21, s19, 5\nv_add_u32 v4, s21, v4")
    P("v_bfe_u32 v5, v0, 5, 1")
    P("s_lshl_b32 s22, s20, 6\ns_lshl_b32 s23, s18, 5\ns_add_u32 s22, s22, s23")
    P("v_mul_u32_u24 v6, 1152, v4\nv_lshl_add_u32 v6, v5, 4, v6\nv_add_u32 v6, s22, v6")
    P("v_lshlrev_b32 v68, 1, v4\nv_lshl_add_u32 v68, v5, 14, v68")
    P(f"s_lshl_b32 s24, s22, 11\ns_add_u32 s24, s24, {abr.AT_OFF}")
    for k in range(8):
        P(f"s_add_u32 s25, s24, {(8*(k//4)+(k%4))*4096}\nbuffer_load_ushort v{70+k}, v68, s[8:11], s25 offen")
    P(f"v_lshlrev_b32 v69, 2, v4\ns_mov_b32 s25, {abr.G_OFF}\nbuffer_load_dword v69, v69, s[8:11], s25 offen")
    for j in range(4):
        P(f"v_lshlrev_b32 v{8+2*j}, 16, v{16+j}\nv_and_b32 v{9+2*j}, 0xffff0000, v{16+j}")
    for s in range(1,NP):
        for j in range(4):
            r=16+4*s+j
            P(f"v_lshlrev_b32 v7, 16, v{r}\nv_add_f32 v{8+2*j}, v{8+2*j}, v7\nv_and_b32 v{r}, 0xffff0000, v{r}\nv_add_f32 v{9+2*j}, v{9+2*j}, v{r}")
    if c.mode=="out":
        for k in range(8): P(f"v_lshlrev_b32 v{70+k}, 16, v{70+k}\nv_sub_f32 v{70+k}, v{70+k}, v{8+k}\nv_fmac_f32 v{8+k}, v{70+k}, v69")
    elif c.mode=="a":
        for k in range(8): P(f"v_lshlrev_b32 v{8+k}, 16, v{70+k}")
    for j in range(4): P(f"v_cvt_pk_bf16_f32 v{64+j}, v{8+2*j}, v{9+2*j}")
    P("v_permlane32_swap_b32 v64, v66\nv_permlane32_swap_b32 v65, v67")
    P("buffer_store_dwordx4 v[64:67], v6, s[12:15], 0 offen")
    P("L_red_end:\ns_endpgm")
    return finalize(P)
def main_kernel(c):
    P=Prog()
    if c.stamp: P("s_memrealtime s[88:89]\ns_memtime s[90:91]\ns_mov_b64 s[92:93], 0\ns_mov_b64 s[94:95], 0\ns_mov_b64 s[96:97], 0")
    P("s_cmp_ge_u32 s2, 256\ns_cbranch_scc1 L_main_end")
    P("s_cmp_ge_u32 s2, 192\ns_cbranch_scc1 L_abr")
    mlp.mlp_body(P,c)
    P("s_branch L_fin\nL_abr:")
    abr.abr_body(P,c)
    P("L_fin:")
    if c.stamp: stamp_epi(P,8,"s[20:23]")
    P("L_main_end:\ns_endpgm")
    return finalize(P)
def build(out, **kw):
    c=mlp.Cfg(); c.codepf=0; c.mode="out"
    for k,v in kw.items(): setattr(c,k,v)
    M=main_kernel(c); Rk=reduce_kernel(c)
    print(out, stats(M))
    s=HDR+f"; @launch kernel=main_kernel grid=(256,1,1) block=(512,1,1) lds={mlp.LDS_BYTES}\n; @launch kernel=red_kernel grid=(576,1,1) block=(256,1,1) lds=0\n"
    s+='.amdgcn_target "amdgcn-amd-amdhsa--gfx950"\n.text\n'+kernel("main_kernel",M)+kernel("red_kernel",Rk)
    s+='.section .rodata,"a"\n'+desc("main_kernel",256,96)+desc("red_kernel",80,80)
    open(out,"w").write(s)
if __name__=="__main__":
    W="work/"
    build(W+"v1.s", stamp=True, codepf=24000)
    build(W+"v1a.s", stamp=True, codepf=24000, mode="a")
    build("gated_mix__ssm_conv_s4d__dense_activation_mish__prompt.s", stamp=False, codepf=24000)
```
